```python
import torch

def _softmax(x, axis=-1):
    return torch.softmax(x, dim=axis)
def _gelu(x):
    return torch.nn.functional.gelu(x, approximate="tanh")
def _silu(x):
    return torch.nn.functional.silu(x)
def _sigmoid(x):
    return torch.sigmoid(x)
def _layernorm(x, axis=-1, eps=1e-5):
    m = x.mean(dim=axis, keepdim=True)
    v = x.var(dim=axis, keepdim=True, unbiased=False)
    return (x - m) / torch.sqrt(v + eps)
def _scatter_add(tgt, idx, src, axis=0):
    return tgt.clone().index_add_(axis, idx, src)
def _segment_sum(src, seg, n):
    out = torch.zeros((n,) + src.shape[1:], dtype=src.dtype)
    return out.index_add_(0, seg, src)
def _pad(x, pw):
    flat = tuple(v for pair in reversed(pw) for v in pair)
    return torch.nn.functional.pad(x, flat)

kernel_name = 'sequential_preLN__ssm_conv_s4__glu_gated_swiglu__prompt'

def setup_inputs():

    _w = (lambda a: (lambda t: t.to(torch.bfloat16) if t.is_floating_point() else t)(torch.as_tensor(a)))
    def _A_setup():
        B, L, D, N = 1, 2048, 576, 128
        A_re = -(lambda _x: torch.exp(torch.as_tensor(_x)))((lambda *s: torch.randn(*s, dtype=torch.bfloat16) * 6.4)(D, N))
        A_im = torch.pi * (lambda *s: torch.randn(*s, dtype=torch.bfloat16) * 0.05)(D, N)
        B_re = (lambda *s: torch.randn(*s, dtype=torch.bfloat16) * 0.05)(D, N)
        B_im = (lambda *s: torch.randn(*s, dtype=torch.bfloat16) * 0.05)(D, N)
        C_re = (lambda *s: torch.randn(*s, dtype=torch.bfloat16) * 0.05)(D, N)
        C_im = (lambda *s: torch.randn(*s, dtype=torch.bfloat16) * 0.05)(D, N)
        log_dt = (lambda *s: torch.randn(*s, dtype=torch.bfloat16) * 0.05)(D) * 0.5 - 4.0
        Dskip = (lambda *s: torch.randn(*s, dtype=torch.bfloat16) * 0.05)(D)
        return {
            "u": _w((lambda *s: torch.randn(*s, dtype=torch.bfloat16) * 0.05)(B, L, D)),
            "A_re": _w(A_re),
            "A_im": _w(A_im),
            "B_re": _w(B_re),
            "B_im": _w(B_im),
            "C_re": _w(C_re),
            "C_im": _w(C_im),
            "log_dt": _w(log_dt),
            "Dskip": _w(Dskip),
        }
    _A_in = _A_setup()

    def _B_setup():
        B, S, D, F = 1, 2048, 576, 4608
        return {
            "x": _w((lambda *s: torch.randn(*s, dtype=torch.bfloat16) * 0.05)(B, S, D)),
            "w1": _w((lambda *s: torch.randn(*s, dtype=torch.bfloat16) * 0.4)(D, F) * (2.0 / D) ** 0.5),
            "w3": _w((lambda *s: torch.randn(*s, dtype=torch.bfloat16) * 0.4)(D, F) * (2.0 / D) ** 0.5),
            "w2": _w((lambda *s: torch.randn(*s, dtype=torch.bfloat16) * 0.4)(F, D) * (2.0 / F) ** 0.5),
        }
    _B_in = _B_setup()

    return {
        "A_u": _A_in["u"],
        "A_A_re": _A_in["A_re"],
        "A_A_im": _A_in["A_im"],
        "A_B_re": _A_in["B_re"],
        "A_B_im": _A_in["B_im"],
        "A_C_re": _A_in["C_re"],
        "A_C_im": _A_in["C_im"],
        "A_log_dt": _A_in["log_dt"],
        "A_Dskip": _A_in["Dskip"],
        "B_x": _B_in["x"],
        "B_w1": _B_in["w1"],
        "B_w3": _B_in["w3"],
        "B_w2": _B_in["w2"],
    }

def reference(A_u, A_A_re, A_A_im, A_B_re, A_B_im, A_C_re, A_C_im, A_log_dt, A_Dskip, B_x, B_w1, B_w3, B_w2):
    def _A_ref(u, A_re, A_im, B_re, B_im, C_re, C_im, log_dt, Dskip):
        Bsz, L, D = u.shape
        dt = torch.exp(log_dt)[:, None]
        A = A_re + 1j * A_im
        Bc = B_re + 1j * B_im
        Cc = C_re + 1j * C_im
        logdA = dt * A
        dB = dt * Bc
        l = (lambda x, dt: x.to(dt))(torch.arange(L), A_re.dtype)
        P = torch.exp(logdA[:, :, None] * l[None, None, :])
        K = torch.einsum("dn,dnl,dn->dl", Cc, P, dB).real
        L2 = 2 * L
        Kp = _pad(K, ((0, 0), (0, L)))
        up = (lambda x, *d: x.permute(*d))(u, 0, 2, 1)
        up = _pad(up, ((0, 0), (0, 0), (0, L)))
        Kf = (lambda x, axes=(-2,-1): torch.fft.rfft2(x.float(), dim=axes))(Kp[:, None, :], axes=(-2, -1))
        Uf = (lambda x, axes=(-2,-1): torch.fft.rfft2(x.float(), dim=axes))(up[:, :, None, :], axes=(-2, -1))
        Yf = Uf * Kf[None, :, :, :]
        y = (lambda x, s, axes=(-2,-1): torch.fft.irfft2(x, s=s, dim=axes).to(torch.bfloat16))(Yf, (1, L2), axes=(-2, -1))[:, :, 0, :L]
        y = (lambda x, *d: x.permute(*d))(y, 0, 2, 1) + u * Dskip[None, None, :]
        return y

    def _B_ref(x, w1, w3, w2):
        gate = torch.einsum("bsd,df->bsf", x, w1)
        up = torch.einsum("bsd,df->bsf", x, w3)
        h = _silu(gate) * up
        out = torch.einsum("bsf,fd->bsd", h, w2)
        return out

    x = A_u
    h = x + _A_ref(_layernorm(x, axis=-1), A_A_re, A_A_im, A_B_re, A_B_im, A_C_re, A_C_im, A_log_dt, A_Dskip)
    h2 = h + _B_ref(_layernorm(h, axis=-1), B_w1, B_w3, B_w2)
    return h2
```

```python
L, D, NS, F = 2048, 576, 128, 4608
UT_OFF   = 0x0
YT_OFF   = 0x240000
H_OFF    = 0x480000
U2F_OFF  = 0x6C0000
KD_OFF   = 0x900000
HHF_OFF  = 0xB40000
PART_OFF = 0x1D40000
SZ_ACT   = L * D * 2
SZ_HH    = L * F * 2
SZ_PART  = 4 * L * D * 4
SZ_W     = D * F * 2
LOG2E = 0x3fb8aa3b
INV2PI = 0x3e22f983

class Asm:
    def __init__(self):
        self.lines = []
    def __call__(self, s):
        for ln in s.strip("\n").split("\n"):
            self.lines.append("    " + ln.strip())
    def label(self, s):
        self.lines.append(s + ":")
    def raw(self, s):
        self.lines.append(s)
    def text(self):
        return "\n".join(self.lines) + "\n"

def kernel_begin(a, name):
    a.raw(f".globl {name}")
    a.raw(".p2align 8")
    a.raw(f".type {name},@function")
    a.label(name)

def kernel_desc(name, vgpr, sgpr=102, accum=None):
    if accum is None:
        accum = (vgpr + 3) // 4 * 4
    return f""".p2align 6
.amdhsa_kernel {name}
  .amdhsa_next_free_vgpr {vgpr}
  .amdhsa_next_free_sgpr {sgpr}
  .amdhsa_accum_offset {accum}
  .amdhsa_group_segment_fixed_size 0
  .amdhsa_kernarg_size 128
  .amdhsa_user_sgpr_count 2
  .amdhsa_user_sgpr_kernarg_segment_ptr 1
  .amdhsa_system_sgpr_workgroup_id_x 1
.end_amdhsa_kernel
"""

def srd(a, d, base, size, off=0):
    if off:
        a(f"s_add_u32 s{d}, s{base}, {off:#x}")
        a(f"s_addc_u32 s{d+1}, s{base+1}, 0")
    else:
        a(f"s_mov_b32 s{d}, s{base}")
        a(f"s_mov_b32 s{d+1}, s{base+1}")
    a(f"s_mov_b32 s{d+2}, {size:#x}")
    a(f"s_mov_b32 s{d+3}, 0x20000")

def vr(b, n=1):
    return f"v{b}" if n == 1 else f"v[{b}:{b+n-1}]"

def wave_reduce(a, regs, sdst):
    n = len(regs)
    pad = max(0, 3 - n)
    def step(mod):
        for r in regs:
            a(f"v_add_f32_dpp v{r}, v{r}, v{r} {mod}")
        if pad: a(f"s_nop {pad-1}" )
    if pad: a(f"s_nop {pad}")
    else: a("s_nop 1")
    step("quad_perm:[1,0,3,2] row_mask:0xf bank_mask:0xf")
    step("quad_perm:[2,3,0,1] row_mask:0xf bank_mask:0xf")
    step("row_half_mirror row_mask:0xf bank_mask:0xf")
    step("row_mirror row_mask:0xf bank_mask:0xf")
    step("row_bcast:15 row_mask:0xa bank_mask:0xf")
    step("row_bcast:31 row_mask:0xc bank_mask:0xf")
    a("s_nop 1")
    for r, s in zip(regs, sdst):
        a(f"v_readlane_b32 s{s}, v{r}, 63")
    a("s_nop 1")

def ln_rows(a, xs, tmp, sreg, out_round=True):
    nr = len(xs)
    t0 = tmp[0:nr]; t1 = tmp[nr:2*nr]; t2 = tmp[2*nr:3*nr]; t3 = tmp[3*nr:4*nr]
    for r in range(nr): a(f"v_add_f32 v{t0[r]}, v{xs[r][0]}, v{xs[r][1]}")
    for e in range(2, 9):
        for r in range(nr): a(f"v_add_f32 v{t0[r]}, v{t0[r]}, v{xs[r][e]}")
    wave_reduce(a, t0, sreg)
    for r in range(nr): a(f"v_mov_b32 v{t1[r]}, s{sreg[r]}")
    for r in range(nr): a(f"v_mul_f32 v{t1[r]}, 0x3ae38e39, v{t1[r]}")
    for r in range(nr): a(f"v_mov_b32 v{t0[r]}, 0")
    for e in range(9):
        for r in range(nr): a(f"v_sub_f32 v{t2[r]}, v{xs[r][e]}, v{t1[r]}")
        for r in range(nr): a(f"v_fmac_f32 v{t0[r]}, v{t2[r]}, v{t2[r]}")
    wave_reduce(a, t0, sreg)
    for r in range(nr): a(f"v_mov_b32 v{t0[r]}, s{sreg[r]}")
    for r in range(nr): a(f"v_mul_f32 v{t0[r]}, 0x3ae38e39, v{t0[r]}")
    for r in range(nr): a(f"v_cvt_pk_bf16_f32 v{t2[r]}, v{t1[r]}, v{t0[r]}")
    for r in range(nr): a(f"v_lshlrev_b32 v{t1[r]}, 16, v{t2[r]}")
    for r in range(nr): a(f"v_and_b32 v{t0[r]}, 0xffff0000, v{t2[r]}")
    for r in range(nr): a(f"v_add_f32 v{t0[r]}, 0x3727c5ac, v{t0[r]}")
    for r in range(nr): a(f"v_cvt_pk_bf16_f32 v{t0[r]}, v{t0[r]}, v{t0[r]}")
    for r in range(nr): a(f"v_and_b32 v{t0[r]}, 0xffff0000, v{t0[r]}")
    for r in range(nr): a(f"v_sqrt_f32 v{t0[r]}, v{t0[r]}")
    a("s_nop 0")
    for r in range(nr): a(f"v_cvt_pk_bf16_f32 v{t0[r]}, v{t0[r]}, v{t0[r]}")
    for r in range(nr): a(f"v_and_b32 v{t0[r]}, 0xffff0000, v{t0[r]}")
    for r in range(nr): a(f"v_rcp_f32 v{t2[r]}, v{t0[r]}")
    a("s_nop 0")
    for e in range(0, 9, 2):
        es = [e] if e == 8 else [e, e + 1]
        for r in range(nr):
            for ee in es: a(f"v_sub_f32 v{xs[r][ee]}, v{xs[r][ee]}, v{t1[r]}")
        for r in range(nr):
            a(f"v_cvt_pk_bf16_f32 v{t3[r]}, v{xs[r][es[0]]}, v{xs[r][es[-1]]}")
        for r in range(nr):
            a(f"v_lshlrev_b32 v{xs[r][es[0]]}, 16, v{t3[r]}")
            if len(es) == 2: a(f"v_and_b32 v{xs[r][es[1]]}, 0xffff0000, v{t3[r]}")
    for e in range(9):
        for r in range(nr): a(f"v_mul_f32 v{t3[r]}, v{xs[r][e]}, v{t2[r]}")
        for r in range(nr): a(f"v_fma_f32 v{xs[r][e]}, -v{t3[r]}, v{t0[r]}, v{xs[r][e]}")
        for r in range(nr): a(f"v_fma_f32 v{xs[r][e]}, v{xs[r][e]}, v{t2[r]}, v{t3[r]}")
```

```python
import sys, importlib
sys.path.insert(0, "gen")
from common import *
HEADER = open("sequential_preLN__ssm_conv_s4__glu_gated_swiglu__prompt.s.ref").read().split("; Override launch")[0]
def build(mods, out):
    a = Asm()
    launches = []; descs = []
    for m in mods:
        mod = importlib.import_module(m)
        res = mod.gen(a)
        if not isinstance(res, list): res = [res]
        for name, (g, b, lds), desc in res:
            launches.append(f"; @launch kernel={name} grid=({g},1,1) block=({b},1,1) lds={lds}")
            descs.append(desc)
    s = HEADER + "\n".join(launches) + "\n" + '.amdgcn_target "amdgcn-amd-amdhsa--gfx950"\n.text\n' + a.text()
    s += '.section .rodata,"a"\n' + "".join(descs)
    open(out, "w").write(s)
if __name__ == "__main__":
    mods = sys.argv[2:]
    build(mods, sys.argv[1])
```

```python
L, D, NS, F = 2048, 576, 128, 4608
UT_OFF   = 0x0
YT_OFF   = 0x240000
H_OFF    = 0x480000
U2F_OFF  = 0x6C0000
KD_OFF   = 0x900000
HHF_OFF  = 0xB40000
PART_OFF = 0x1D40000
FLAG_OFF = 0x2F40000
FLAG_BYTES = 32 * 4096
SZ_ACT   = L * D * 2
SZ_HH    = L * F * 2
SZ_PART  = 4 * L * D * 4
SZ_W     = D * F * 2
LOG2E = 0x3fb8aa3b
INV2PI = 0x3e22f983

class Asm:
    def __init__(self):
        self.lines = []
    def __call__(self, s):
        for ln in s.strip("\n").split("\n"):
            self.lines.append("    " + ln.strip())
    def label(self, s):
        self.lines.append(s + ":")
    def raw(self, s):
        self.lines.append(s)
    def text(self):
        return "\n".join(self.lines) + "\n"

def kernel_begin(a, name):
    a.raw(f".globl {name}")
    a.raw(".p2align 8")
    a.raw(f".type {name},@function")
    a.label(name)

def kernel_desc(name, vgpr, sgpr=102, accum=None):
    if accum is None:
        accum = (vgpr + 3) // 4 * 4
    return f""".p2align 6
.amdhsa_kernel {name}
  .amdhsa_next_free_vgpr {vgpr}
  .amdhsa_next_free_sgpr {sgpr}
  .amdhsa_accum_offset {accum}
  .amdhsa_group_segment_fixed_size 0
  .amdhsa_kernarg_size 128
  .amdhsa_user_sgpr_count 2
  .amdhsa_user_sgpr_kernarg_segment_ptr 1
  .amdhsa_system_sgpr_workgroup_id_x 1
.end_amdhsa_kernel
"""

def srd(a, d, base, size, off=0):
    if off:
        a(f"s_add_u32 s{d}, s{base}, {off:#x}")
        a(f"s_addc_u32 s{d+1}, s{base+1}, 0")
    else:
        a(f"s_mov_b32 s{d}, s{base}")
        a(f"s_mov_b32 s{d+1}, s{base+1}")
    a(f"s_mov_b32 s{d+2}, {size:#x}")
    a(f"s_mov_b32 s{d+3}, 0x20000")

def vr(b, n=1):
    return f"v{b}" if n == 1 else f"v[{b}:{b+n-1}]"

def wave_reduce(a, regs, sdst):
    n = len(regs)
    pad = max(0, 3 - n)
    def step(mod):
        for r in regs:
            a(f"v_add_f32_dpp v{r}, v{r}, v{r} {mod}")
        if pad: a(f"s_nop {pad-1}" )
    if pad: a(f"s_nop {pad}")
    else: a("s_nop 1")
    step("quad_perm:[1,0,3,2] row_mask:0xf bank_mask:0xf")
    step("quad_perm:[2,3,0,1] row_mask:0xf bank_mask:0xf")
    step("row_half_mirror row_mask:0xf bank_mask:0xf")
    step("row_mirror row_mask:0xf bank_mask:0xf")
    step("row_bcast:15 row_mask:0xa bank_mask:0xf")
    step("row_bcast:31 row_mask:0xc bank_mask:0xf")
    a("s_nop 1")
    for r, s in zip(regs, sdst):
        a(f"v_readlane_b32 s{s}, v{r}, 63")
    a("s_nop 1")

def ln_rows(a, xs, tmp, sreg, out_round=True):
    nr = len(xs)
    t0 = tmp[0:nr]; t1 = tmp[nr:2*nr]; t2 = tmp[2*nr:3*nr]; t3 = tmp[3*nr:4*nr]
    for r in range(nr): a(f"v_add_f32 v{t0[r]}, v{xs[r][0]}, v{xs[r][1]}")
    for e in range(2, 9):
        for r in range(nr): a(f"v_add_f32 v{t0[r]}, v{t0[r]}, v{xs[r][e]}")
    wave_reduce(a, t0, sreg)
    for r in range(nr): a(f"v_mov_b32 v{t1[r]}, s{sreg[r]}")
    for r in range(nr): a(f"v_mul_f32 v{t1[r]}, 0x3ae38e39, v{t1[r]}")
    for r in range(nr): a(f"v_mov_b32 v{t0[r]}, 0")
    for e in range(9):
        for r in range(nr): a(f"v_sub_f32 v{t2[r]}, v{xs[r][e]}, v{t1[r]}")
        for r in range(nr): a(f"v_fmac_f32 v{t0[r]}, v{t2[r]}, v{t2[r]}")
    wave_reduce(a, t0, sreg)
    for r in range(nr): a(f"v_mov_b32 v{t0[r]}, s{sreg[r]}")
    for r in range(nr): a(f"v_mul_f32 v{t0[r]}, 0x3ae38e39, v{t0[r]}")
    for r in range(nr): a(f"v_cvt_pk_bf16_f32 v{t2[r]}, v{t1[r]}, v{t0[r]}")
    for r in range(nr): a(f"v_lshlrev_b32 v{t1[r]}, 16, v{t2[r]}")
    for r in range(nr): a(f"v_and_b32 v{t0[r]}, 0xffff0000, v{t2[r]}")
    for r in range(nr): a(f"v_add_f32 v{t0[r]}, 0x3727c5ac, v{t0[r]}")
    for r in range(nr): a(f"v_cvt_pk_bf16_f32 v{t0[r]}, v{t0[r]}, v{t0[r]}")
    for r in range(nr): a(f"v_and_b32 v{t0[r]}, 0xffff0000, v{t0[r]}")
    for r in range(nr): a(f"v_sqrt_f32 v{t0[r]}, v{t0[r]}")
    a("s_nop 0")
    for r in range(nr): a(f"v_cvt_pk_bf16_f32 v{t0[r]}, v{t0[r]}, v{t0[r]}")
    for r in range(nr): a(f"v_and_b32 v{t0[r]}, 0xffff0000, v{t0[r]}")
    for r in range(nr): a(f"v_rcp_f32 v{t2[r]}, v{t0[r]}")
    a("s_nop 0")
    for e in range(0, 9, 2):
        es = [e] if e == 8 else [e, e + 1]
        for r in range(nr):
            for ee in es: a(f"v_sub_f32 v{xs[r][ee]}, v{xs[r][ee]}, v{t1[r]}")
        for r in range(nr):
            a(f"v_cvt_pk_bf16_f32 v{t3[r]}, v{xs[r][es[0]]}, v{xs[r][es[-1]]}")
        for r in range(nr):
            a(f"v_lshlrev_b32 v{xs[r][es[0]]}, 16, v{t3[r]}")
            if len(es) == 2: a(f"v_and_b32 v{xs[r][es[1]]}, 0xffff0000, v{t3[r]}")
    for e in range(9):
        for r in range(nr): a(f"v_mul_f32 v{t3[r]}, v{xs[r][e]}, v{t2[r]}")
        for r in range(nr): a(f"v_fma_f32 v{xs[r][e]}, -v{t3[r]}, v{t0[r]}, v{xs[r][e]}")
        for r in range(nr): a(f"v_fma_f32 v{xs[r][e]}, v{xs[r][e]}, v{t2[r]}, v{t3[r]}")

import os
STAMP = int(os.environ.get("STAMP", "0"))
STAMP_OFF = 0x3000000
class Stamps:
    def __init__(self, a, on, region):
        self.a = a; self.on = on; self.n = 0; self.region = region
    def mark(self, real=False):
        if not self.on: return
        k = self.n; self.n += 1
        assert k < 18
        self.a(f"{'s_memrealtime' if real else 's_memtime'} s[{60+2*k}:{61+2*k}]")
    def dump(self, ws_lo, wave_sgpr, nwaves, vt=(2,3)):
        if not self.on: return
        a = self.a
        a("s_waitcnt lgkmcnt(0)")
        srd(a, 96, ws_lo, 0x1000000, STAMP_OFF + self.region * 0x100000)
        a(f"s_mul_i32 s100, s2, {nwaves}")
        a(f"s_add_u32 s100, s100, s{wave_sgpr}")
        a(f"s_lshl_b32 s100, s100, 7")
        a(f"v_mov_b32 v{vt[0]}, 0")
        for k in range(self.n):
            a(f"v_mov_b32 v{vt[1]}, s{60+2*k}")
            a(f"buffer_store_dword v{vt[1]}, v{vt[0]}, s[96:99], s100 offen offset:{4*k}")
        a("s_waitcnt vmcnt(0)")
```

```python
L, D, NS, F = 2048, 576, 128, 4608
UT_OFF   = 0x0
YT_OFF   = 0x240000
H_OFF    = 0x480000
U2F_OFF  = 0x6C0000
KD_OFF   = 0x900000
HHF_OFF  = 0xB40000
PART_OFF = 0x1D40000
STAT_OFF = 0x2F80000
FLAG_OFF = 0x2F40000
FLAG_BYTES = 32 * 4096
SZ_ACT   = L * D * 2
SZ_HH    = L * F * 2
SZ_PART  = 4 * L * D * 4
SZ_W     = D * F * 2
LOG2E = 0x3fb8aa3b
INV2PI = 0x3e22f983

class Asm:
    def __init__(self):
        self.lines = []
    def __call__(self, s):
        for ln in s.strip("\n").split("\n"):
            self.lines.append("    " + ln.strip())
    def label(self, s):
        self.lines.append(s + ":")
    def raw(self, s):
        self.lines.append(s)
    def text(self):
        return "\n".join(self.lines) + "\n"

def kernel_begin(a, name):
    a.raw(f".globl {name}")
    a.raw(".p2align 8")
    a.raw(f".type {name},@function")
    a.label(name)

def kernel_desc(name, vgpr, sgpr=102, accum=None):
    if accum is None:
        accum = (vgpr + 3) // 4 * 4
    return f""".p2align 6
.amdhsa_kernel {name}
  .amdhsa_next_free_vgpr {vgpr}
  .amdhsa_next_free_sgpr {sgpr}
  .amdhsa_accum_offset {accum}
  .amdhsa_group_segment_fixed_size 0
  .amdhsa_kernarg_size 128
  .amdhsa_user_sgpr_count 2
  .amdhsa_user_sgpr_kernarg_segment_ptr 1
  .amdhsa_system_sgpr_workgroup_id_x 1
.end_amdhsa_kernel
"""

def srd(a, d, base, size, off=0):
    if off:
        a(f"s_add_u32 s{d}, s{base}, {off:#x}")
        a(f"s_addc_u32 s{d+1}, s{base+1}, 0")
    else:
        a(f"s_mov_b32 s{d}, s{base}")
        a(f"s_mov_b32 s{d+1}, s{base+1}")
    a(f"s_mov_b32 s{d+2}, {size:#x}")
    a(f"s_mov_b32 s{d+3}, 0x20000")

def vr(b, n=1):
    return f"v{b}" if n == 1 else f"v[{b}:{b+n-1}]"

def wave_reduce(a, regs, sdst):
    n = len(regs)
    pad = max(0, 3 - n)
    def step(mod):
        for r in regs:
            a(f"v_add_f32_dpp v{r}, v{r}, v{r} {mod}")
        if pad: a(f"s_nop {pad-1}" )
    if pad: a(f"s_nop {pad}")
    else: a("s_nop 1")
    step("quad_perm:[1,0,3,2] row_mask:0xf bank_mask:0xf")
    step("quad_perm:[2,3,0,1] row_mask:0xf bank_mask:0xf")
    step("row_half_mirror row_mask:0xf bank_mask:0xf")
    step("row_mirror row_mask:0xf bank_mask:0xf")
    step("row_bcast:15 row_mask:0xa bank_mask:0xf")
    step("row_bcast:31 row_mask:0xc bank_mask:0xf")
    a("s_nop 1")
    for r, s in zip(regs, sdst):
        a(f"v_readlane_b32 s{s}, v{r}, 63")
    a("s_nop 1")

def ln_stats(a, xs, tmp, sreg):
    nr = len(xs)
    t0 = tmp[0:nr]; t1 = tmp[nr:2*nr]; t2 = tmp[2*nr:3*nr]
    for r in range(nr): a(f"v_add_f32 v{t0[r]}, v{xs[r][0]}, v{xs[r][1]}")
    for e in range(2, 9):
        for r in range(nr): a(f"v_add_f32 v{t0[r]}, v{t0[r]}, v{xs[r][e]}")
    wave_reduce(a, t0, sreg)
    for r in range(nr): a(f"v_mov_b32 v{t1[r]}, s{sreg[r]}")
    for r in range(nr): a(f"v_mul_f32 v{t1[r]}, 0x3ae38e39, v{t1[r]}")
    for r in range(nr): a(f"v_mov_b32 v{t0[r]}, 0")
    for e in range(9):
        for r in range(nr): a(f"v_sub_f32 v{t2[r]}, v{xs[r][e]}, v{t1[r]}")
        for r in range(nr): a(f"v_fmac_f32 v{t0[r]}, v{t2[r]}, v{t2[r]}")
    wave_reduce(a, t0, sreg)
    for r in range(nr): a(f"v_mov_b32 v{t0[r]}, s{sreg[r]}")
    for r in range(nr): a(f"v_mul_f32 v{t0[r]}, 0x3ae38e39, v{t0[r]}")
    for r in range(nr): a(f"v_cvt_pk_bf16_f32 v{t2[r]}, v{t1[r]}, v{t0[r]}")
    for r in range(nr): a(f"v_lshlrev_b32 v{t1[r]}, 16, v{t2[r]}")
    for r in range(nr): a(f"v_and_b32 v{t0[r]}, 0xffff0000, v{t2[r]}")
    for r in range(nr): a(f"v_add_f32 v{t0[r]}, 0x3727c5ac, v{t0[r]}")
    for r in range(nr): a(f"v_cvt_pk_bf16_f32 v{t0[r]}, v{t0[r]}, v{t0[r]}")
    for r in range(nr): a(f"v_and_b32 v{t0[r]}, 0xffff0000, v{t0[r]}")
    for r in range(nr): a(f"v_sqrt_f32 v{t0[r]}, v{t0[r]}")
    a("s_nop 0")
    for r in range(nr): a(f"v_cvt_pk_bf16_f32 v{t0[r]}, v{t0[r]}, v{t0[r]}")
    for r in range(nr): a(f"v_and_b32 v{t0[r]}, 0xffff0000, v{t0[r]}")

def ln_norm(a, xs, tmp):
    nr = len(xs)
    t0 = tmp[0:nr]; t1 = tmp[nr:2*nr]; t2 = tmp[2*nr:3*nr]; t3 = tmp[3*nr:4*nr]
    for r in range(nr): a(f"v_rcp_f32 v{t2[r]}, v{t0[r]}")
    a("s_nop 0")
    for e in range(0, 9, 2):
        es = [e] if e == 8 else [e, e + 1]
        for r in range(nr):
            for ee in es: a(f"v_sub_f32 v{xs[r][ee]}, v{xs[r][ee]}, v{t1[r]}")
        for r in range(nr):
            a(f"v_cvt_pk_bf16_f32 v{t3[r]}, v{xs[r][es[0]]}, v{xs[r][es[-1]]}")
        for r in range(nr):
            a(f"v_lshlrev_b32 v{xs[r][es[0]]}, 16, v{t3[r]}")
            if len(es) == 2: a(f"v_and_b32 v{xs[r][es[1]]}, 0xffff0000, v{t3[r]}")
    for e in range(9):
        for r in range(nr): a(f"v_mul_f32 v{t3[r]}, v{xs[r][e]}, v{t2[r]}")
        for r in range(nr): a(f"v_fma_f32 v{xs[r][e]}, -v{t3[r]}, v{t0[r]}, v{xs[r][e]}")
        for r in range(nr): a(f"v_fma_f32 v{xs[r][e]}, v{xs[r][e]}, v{t2[r]}, v{t3[r]}")

def ln_rows(a, xs, tmp, sreg):
    ln_stats(a, xs, tmp, sreg)
    ln_norm(a, xs, tmp)

import os
STAMP = int(os.environ.get("STAMP", "0"))
STAMP_OFF = 0x3000000
class Stamps:
    def __init__(self, a, on, region):
        self.a = a; self.on = on; self.n = 0; self.region = region
    def mark(self, real=False):
        if not self.on: return
        k = self.n; self.n += 1
        assert k < 18
        self.a(f"{'s_memrealtime' if real else 's_memtime'} s[{60+2*k}:{61+2*k}]")
    def dump(self, ws_lo, wave_sgpr, nwaves, vt=(2,3)):
        if not self.on: return
        a = self.a
        a("s_waitcnt lgkmcnt(0)")
        srd(a, 96, ws_lo, 0x1000000, STAMP_OFF + self.region * 0x100000)
        a(f"s_mul_i32 s100, s2, {nwaves}")
        a(f"s_add_u32 s100, s100, s{wave_sgpr}")
        a(f"s_lshl_b32 s100, s100, 7")
        a(f"v_mov_b32 v{vt[0]}, 0")
        for k in range(self.n):
            a(f"v_mov_b32 v{vt[1]}, s{60+2*k}")
            a(f"buffer_store_dword v{vt[1]}, v{vt[0]}, s[96:99], s100 offen offset:{4*k}")
        a("s_waitcnt vmcnt(0)")
```
